```python
import torch

def _softmax(x, axis=-1):
    return torch.softmax(x, dim=axis)
def _gelu(x):
    return torch.nn.functional.gelu(x, approximate="tanh")
def _silu(x):
    return torch.nn.functional.silu(x)
def _sigmoid(x):
    return torch.sigmoid(x)
def _layernorm(x, axis=-1, eps=1e-5):
    m = x.mean(dim=axis, keepdim=True)
    v = x.var(dim=axis, keepdim=True, unbiased=False)
    return (x - m) / torch.sqrt(v + eps)
def _scatter_add(tgt, idx, src, axis=0):
    return tgt.clone().index_add_(axis, idx, src)
def _segment_sum(src, seg, n):
    out = torch.zeros((n,) + src.shape[1:], dtype=src.dtype)
    return out.index_add_(0, seg, src)
def _pad(x, pw):
    flat = tuple(v for pair in reversed(pw) for v in pair)
    return torch.nn.functional.pad(x, flat)

kernel_name = 'standalone__gqa_softmax__near_ridge'

def setup_inputs():

    _w = (lambda a: (lambda t: t.to(torch.bfloat16) if t.is_floating_point() else t)(torch.as_tensor(a)))
    B, Hq, Hkv, Sq, Sk, D = 8, 32, 32, 384, 512, 192
    return {
        "q": _w((lambda *s: torch.randn(*s, dtype=torch.bfloat16) * 0.8)(B, Hq, Sq, D)),
        "k": _w((lambda *s: torch.randn(*s, dtype=torch.bfloat16) * 0.8)(B, Hkv, Sk, D)),
        "v": _w((lambda *s: torch.randn(*s, dtype=torch.bfloat16) * 0.05)(B, Hkv, Sk, D)),
    }

def reference(q, k, v):
    B, Hq, Sq, D = q.shape
    Hkv = k.shape[1]
    rep = Hq // Hkv
    k = (lambda x, n, axis: torch.repeat_interleave(x, n, dim=axis))(k, rep, axis=1)
    v = (lambda x, n, axis: torch.repeat_interleave(x, n, dim=axis))(v, rep, axis=1)
    scale = D ** -0.5
    scores = torch.einsum("bhqd,bhkd->bhqk", q, k) * scale
    p = _softmax(scores, axis=-1)
    return torch.einsum("bhqk,bhkd->bhqd", p, v)
```

```python
import sys
def gen(pattern, REP=256, waves=4, lds=65536):
    o = []
    o.append("; @launch grid=(256,1,1) block=(%d,1,1) lds=%d" % (64*waves, lds))
    o.append('.amdgcn_target "amdgcn-amd-amdhsa--gfx950"\n.text\n.globl ic_kernel\n.p2align 8\n.type ic_kernel,@function\nic_kernel:')
    o.append("""
    s_cmp_ge_u32 s2, 256
    s_cbranch_scc1 L_done
    s_load_dwordx2 s[4:5], s[0:1], 40
    s_mov_b32 s20, 0
    v_mov_b32 v1, 0
    v_mov_b32 v2, 1.0
    v_mov_b32 v3, 1.0
    s_mov_b32 s30, 1.0
    s_waitcnt lgkmcnt(0)
    s_mov_b32 s8, s4
    s_mov_b32 s9, s5
    s_mov_b32 s10, 0x1000000
    s_mov_b32 s11, 0x20000
    v_lshrrev_b32 v10, 6, v0
    s_lshl_b32 s3, s2, 3
    v_add_u32 v10, s3, v10
    v_lshlrev_b32 v10, 5, v10
    v_and_b32 v11, 63, v0
    v_lshlrev_b32 v12, 3, v11   ; lane*8
    v_lshlrev_b32 v11, 4, v11   ; lane*16
    s_mov_b32 m0, 0
L_loop:
    s_barrier
    s_memtime s[12:13]
    s_waitcnt lgkmcnt(0)
.p2align 6
""")
    for i in range(REP):
        for line in pattern(i):
            o.append("    " + line)
    o.append("""
    s_waitcnt lgkmcnt(0) vmcnt(0)
    s_memtime s[14:15]
    s_waitcnt lgkmcnt(0)
    s_sub_u32 s14, s14, s12
    v_mov_b32 v4, s14
    s_lshl_b32 s21, s20, 2
    buffer_store_dword v4, v10, s[8:11], s21 offen
    s_add_u32 s20, s20, 1
    s_cmp_lt_u32 s20, 3
    s_cbranch_scc1 L_loop
    s_waitcnt vmcnt(0)
L_done:
    s_endpgm
.section .rodata,"a"
.p2align 6
.amdhsa_kernel ic_kernel
  .amdhsa_next_free_vgpr 256
  .amdhsa_next_free_sgpr 40
  .amdhsa_accum_offset 256
  .amdhsa_group_segment_fixed_size 0
  .amdhsa_kernarg_size 48
  .amdhsa_user_sgpr_count 2
  .amdhsa_user_sgpr_kernarg_segment_ptr 1
  .amdhsa_system_sgpr_workgroup_id_x 1
.end_amdhsa_kernel
""")
    return "\n".join(o)

def m16(i):
    a = 64 + (i % 8) * 4
    return "v_mfma_f32_16x16x32_bf16 v[%d:%d], v[40:43], v[44:47], v[%d:%d]" % (a, a+3, a, a+3)
def m32(i):
    a = 128 + (i % 4) * 16
    return "v_mfma_f32_32x32x16_bf16 v[%d:%d], v[40:43], v[44:47], v[%d:%d]" % (a, a+15, a, a+15)
def fma(j): return "v_fma_f32 v%d, v2, v3, v%d" % (20 + j % 8, 20 + j % 8)
def fmas(j): return "v_fma_f32 v%d, v%d, s30, v3" % (20 + j % 8, 28 + j % 8)
def add(j): return "v_add_f32 v%d, v2, v%d" % (20 + j % 8, 20 + j % 8)
def exp(j): return "v_exp_f32 v%d, v%d" % (20 + j % 8, 28 + j % 8)
def cvt(j): return "v_cvt_pk_bf16_f32 v%d, v2, v3" % (20 + j % 8)
def dsr(j): return "ds_read_b128 v[%d:%d], v11 offset:%d" % (100 + (j % 6)*4, 103 + (j % 6)*4, (j % 16) * 1024)
def dst(j): return "ds_read_b64_tr_b16 v[%d:%d], v12 offset:%d" % (100 + (j % 12)*2, 101 + (j % 12)*2, (j % 16) * 1024)
def snop(j): return "s_nop 0"
def sadd(j): return "s_add_u32 s31, s31, 1"
def dma(j): return "buffer_load_dwordx4 v11, s[8:11], 0 offen offset:%d lds" % ((j % 4) * 1024)

P = {
 "add": lambda i: [add(i)],
 "fma": lambda i: [fma(i)],
 "fmas": lambda i: [fmas(i)],
 "exp": lambda i: [exp(i)],
 "cvt": lambda i: [cvt(i)],
 "snop": lambda i: [snop(i)],
 "sadd": lambda i: [sadd(i)],
 "m16": lambda i: [m16(i)],
 "m16_1add": lambda i: [m16(i), add(i)],
 "m16_2add": lambda i: [m16(i), add(2*i), add(2*i+1)],
 "m16_3add": lambda i: [m16(i), add(3*i), add(3*i+1), add(3*i+2)],
 "m16_2fma": lambda i: [m16(i), fma(2*i), fma(2*i+1)],
 "m16_3fma": lambda i: [m16(i), fma(3*i), fma(3*i+1), fma(3*i+2)],
 "m16_1exp": lambda i: [m16(i), exp(i)],
 "m16_exp_add": lambda i: [m16(i), exp(2*i), add(2*i+1)],
 "m16_exp_fma": lambda i: [m16(i), exp(2*i), fma(2*i+1)],
 "m16_2add_dsr": lambda i: [m16(i), add(2*i), add(2*i+1), dsr(i)] if i % 2 == 0 else [m16(i), add(2*i), add(2*i+1)],
 "m16_2add_dst": lambda i: [m16(i), add(2*i), add(2*i+1), dst(i)] if i % 2 == 0 else [m16(i), add(2*i), add(2*i+1)],
 "m16_2add_sadd": lambda i: [m16(i), add(2*i), add(2*i+1), sadd(i)],
 "m16_add_dsr": lambda i: [m16(i), add(2*i), dsr(i)] if i % 2 == 0 else [m16(i), add(2*i), add(2*i+1)],
 "m16_exp_dst": lambda i: [m16(i), exp(2*i), dst(i)] if i % 2 == 0 else [m16(i), exp(2*i)],
 "m32": lambda i: [m32(i)],
 "m32_5add": lambda i: [m32(i)] + [add(5*i+j) for j in range(5)],
 "m32_6add": lambda i: [m32(i)] + [add(6*i+j) for j in range(6)],
 "m32_7add": lambda i: [m32(i)] + [add(7*i+j) for j in range(7)],
 "m32_6fma": lambda i: [m32(i)] + [fma(6*i+j) for j in range(6)],
 "m32_5fma": lambda i: [m32(i)] + [fma(5*i+j) for j in range(5)],
 "m32_3exp": lambda i: [m32(i)] + [exp(3*i+j) for j in range(3)],
 "m16_dma12": lambda i: [m16(i), dma(i//12)] if i % 12 == 0 else [m16(i)],
 "m16_2add_dma12": lambda i: [m16(i), add(2*i), dma(i//12)] if i % 12 == 0 else [m16(i), add(2*i), add(2*i+1)],
}
if __name__ == "__main__":
    names = sys.argv[1:] or list(P)
    for n in names:
        open("is_%s.s" % n, "w").write(gen(P[n]))
    print(" ".join("is_%s.s" % n for n in names))
```

```python
from gen_issue import *
P2 = {
 "dsr": lambda i: [dsr(i)],
 "dst": lambda i: [dst(i)],
 "add_dsr": lambda i: [add(i), dsr(i)],
 "3add_dsr": lambda i: [add(3*i), add(3*i+1), add(3*i+2), dsr(i)],
 "m16_dsr": lambda i: [m16(i), dsr(i)],
 "m16_dst": lambda i: [m16(i), dst(i)],
 "m16_2dst": lambda i: [m16(i), dst(2*i), dst(2*i+1)],
 "m16_dsr_add": lambda i: [m16(i), dsr(i), add(i)],
 "m16_add_dsr_all": lambda i: [m16(i), add(i), dsr(i)],
 "m16_dst_add": lambda i: [m16(i), dst(i), add(i)],
 "m16_dsr_alt": lambda i: [m16(i), dsr(i)] if i % 2 == 0 else [m16(i), add(2*i), add(2*i+1)],
 "m16_dsradd_alt": lambda i: [m16(i), dsr(i), add(i)] if i % 2 == 0 else [m16(i), add(2*i), add(2*i+1)],
 "m16_2dst_alt": lambda i: [m16(i), dst(2*i), dst(2*i+1)] if i % 2 == 0 else [m16(i), add(2*i), add(2*i+1)],
 "m16_sadd_add": lambda i: [m16(i), sadd(i), add(i)],
 "m16_2sadd": lambda i: [m16(i), sadd(i), sadd(i)],
 "m16_3sadd": lambda i: [m16(i), sadd(i), sadd(i), sadd(i)],
 "m16_2snop": lambda i: [m16(i), snop(i), snop(i)],
 "m16_3snop": lambda i: [m16(i), snop(i), snop(i), snop(i)],
 "m16_wait_add": lambda i: [m16(i), "s_waitcnt lgkmcnt(0)", add(i)],
 "m16_wait_2add": lambda i: [m16(i), "s_waitcnt lgkmcnt(0)", add(2*i), add(2*i+1)],
 "m32_dsr_4add": lambda i: [m32(i), dsr(i)] + [add(4*i+j) for j in range(4)],
 "m32_dsr_5add": lambda i: [m32(i), dsr(i)] + [add(5*i+j) for j in range(5)],
 "m32_4add_dsr": lambda i: [m32(i)] + [add(4*i+j) for j in range(4)] + [dsr(i)],
 "m32_5add_dsr": lambda i: [m32(i)] + [add(5*i+j) for j in range(5)] + [dsr(i)],
 "m32_3add_dsr": lambda i: [m32(i)] + [add(3*i+j) for j in range(3)] + [dsr(i)],
 "m32_2add_dsr_2add": lambda i: [m32(i)] + [add(4*i), add(4*i+1), dsr(i), add(4*i+2), add(4*i+3)],
 "m32_2dst_4add": lambda i: [m32(i), dst(2*i), dst(2*i+1)] + [add(4*i+j) for j in range(4)],
 "m32_2dst_3add": lambda i: [m32(i), dst(2*i), dst(2*i+1)] + [add(4*i+j) for j in range(3)],
 "m32_6add_sadd": lambda i: [m32(i)] + [add(6*i+j) for j in range(6)] + [sadd(i)],
 "m32_sadd_6add": lambda i: [m32(i), sadd(i)] + [add(6*i+j) for j in range(6)],
}
if __name__ == "__main__":
    for n in P2:
        open("is_%s.s" % n, "w").write(gen(P2[n]))
    print(" ".join("is_%s.s" % n for n in P2))
```
